```python
import torch

def _softmax(x, axis=-1):
    return torch.softmax(x, dim=axis)

def _gelu(x):
    return torch.nn.functional.gelu(x, approximate='tanh')

def _silu(x):
    return torch.nn.functional.silu(x)

def _sigmoid(x):
    return torch.sigmoid(x)

def _layernorm(x, axis=-1, eps=1e-05):
    m = x.mean(dim=axis, keepdim=True)
    v = x.var(dim=axis, keepdim=True, unbiased=False)
    return (x - m) / torch.sqrt(v + eps)

def _scatter_add(tgt, idx, src, axis=0):
    return tgt.clone().index_add_(axis, idx, src)

def _segment_sum(src, seg, n):
    out = torch.zeros((n,) + src.shape[1:], dtype=src.dtype)
    return out.index_add_(0, seg, src)

def _pad(x, pw):
    flat = tuple((v for pair in reversed(pw) for v in pair))
    return torch.nn.functional.pad(x, flat)
kernel_name = 'adaLN_cond__gqa_block_cached__geglu_ffn__decode'

def setup_inputs():

    _w = lambda a: (lambda t: t.to(torch.bfloat16) if t.is_floating_point() else t)(torch.as_tensor(a))

    def _A_setup():
        B, Sq, D = (1, 1, 1024)
        Hq, Hkv, Sk, Dh = (32, 4, 65536, 128)
        assert Hq % Hkv == 0, (Hq, Hkv)
        return {'x': _w((lambda *s: torch.randn(*s, dtype=torch.bfloat16) * 0.05)(B, Sq, D)), 'k_cache': _w((lambda *s: torch.randn(*s, dtype=torch.bfloat16) * 3.2)(B, Hkv, Sk, Dh)), 'v_cache': _w((lambda *s: torch.randn(*s, dtype=torch.bfloat16) * 0.4)(B, Hkv, Sk, Dh)), 'wq': _w((lambda *s: torch.randn(*s, dtype=torch.bfloat16) * 3.2)(D, Hq * Dh) * D ** (-0.5)), 'wo': _w((lambda *s: torch.randn(*s, dtype=torch.bfloat16) * 0.4)(Hq * Dh, D) * (Hq * Dh) ** (-0.5))}
    _A_in = _A_setup()

    def _B_setup():
        B, S, D, F = (1, 1, 1024, 3584)
        return {'x': _w((lambda *s: torch.randn(*s, dtype=torch.bfloat16) * 0.05)(B, S, D)), 'w_gate': _w((lambda *s: torch.randn(*s, dtype=torch.bfloat16) * 0.05)(D, F)), 'w_up': _w((lambda *s: torch.randn(*s, dtype=torch.bfloat16) * 0.05)(D, F)), 'w_down': _w((lambda *s: torch.randn(*s, dtype=torch.bfloat16) * 0.05)(F, D))}
    _B_in = _B_setup()
    return {'A_x': _A_in['x'], 'A_k_cache': _A_in['k_cache'], 'A_v_cache': _A_in['v_cache'], 'A_wq': _A_in['wq'], 'A_wo': _A_in['wo'], 'B_x': _B_in['x'], 'B_w_gate': _B_in['w_gate'], 'B_w_up': _B_in['w_up'], 'B_w_down': _B_in['w_down'], 'c': _w((lambda *s: torch.randn(*s, dtype=torch.bfloat16) * 0.4)(1, 1024) * 8.0), 'w_mod': _w((lambda *s: torch.randn(*s, dtype=torch.bfloat16) * 0.4)(1024, 6 * 1024) * 1024 ** (-0.5) * 8.0)}

def reference(A_x, A_k_cache, A_v_cache, A_wq, A_wo, B_x, B_w_gate, B_w_up, B_w_down, c, w_mod):

    def _A_ref(x, k_cache, v_cache, wq, wo):
        B, Sq, D = x.shape
        Hq, Dh = (32, 128)
        Hkv = k_cache.shape[1]
        rep = Hq // Hkv
        q = (lambda x, *d: x.permute(*d))((x @ wq).reshape(B, Sq, Hq, Dh), 0, 2, 1, 3)
        k = (lambda x, n, axis: torch.repeat_interleave(x, n, dim=axis))(k_cache, rep, axis=1)
        v = (lambda x, n, axis: torch.repeat_interleave(x, n, dim=axis))(v_cache, rep, axis=1)
        scores = torch.einsum('bhqd,bhkd->bhqk', q, k) * Dh ** (-0.5)
        p = _softmax(scores, axis=-1)
        o = torch.einsum('bhqk,bhkd->bhqd', p, v)
        return (lambda x, *d: x.permute(*d))(o, 0, 2, 1, 3).reshape(B, Sq, Hq * Dh) @ wo

    def _B_ref(x, w_gate, w_up, w_down):
        return _gelu(x @ w_gate) * (x @ w_up) @ w_down
    x = A_x
    mod = (_silu(c) @ w_mod).reshape(c.shape[0], 6, 1, -1)
    sa, ca, ga, sb, cb, gb = (mod[:, 0].clone(), mod[:, 1].clone(), mod[:, 2].clone(), mod[:, 3].clone(), mod[:, 4].clone(), mod[:, 5].clone())
    h = _layernorm(x, axis=-1) * (1 + ca) + sa
    x = x + ga * _A_ref(h, A_k_cache, A_v_cache, A_wq, A_wo)
    h = _layernorm(x, axis=-1) * (1 + cb) + sb
    x = x + gb * _B_ref(h, B_w_gate, B_w_up, B_w_down)
    return x
```

```python
import sys

NAME = "adaLN_cond__gqa_block_cached__geglu_ffn__decode"

S1 = 8
S2 = 8
NCH = 64
S4 = 32
S5 = 4
S6 = 28
WS_MODP = 0
WS_QP = WS_MODP + S1 * 6144 * 4
WS_AM = WS_QP + S2 * 4096 * 4
WS_AL = WS_AM + 4 * NCH * 8 * 4
WS_AO = WS_AL + 4 * NCH * 8 * 4
WS_WOP = WS_AO + 4 * NCH * 8 * 128 * 4
WS_GUP = WS_WOP + S4 * 1024 * 4
WS_DP = WS_GUP + 2 * S5 * 3584 * 4
WS_X1 = WS_DP + S6 * 1024 * 4
WS_END = WS_X1 + 1024 * 4
WS_SIZE = 268435456

KA_X, KA_K, KA_V, KA_WQ, KA_WO, KA_BX, KA_WG, KA_WU, KA_WD, KA_C, KA_WMOD = [8 * i for i in range(11)]
KA_OUT, KA_DBG, KA_WS = 88, 96, 104

L = []
def e(s):
    L.append("    " + s)
def lab(s):
    L.append(s + ":")
def cmt(s):
    L.append("    ; " + s)

def srd(sd, sptr, nbytes):
    e(f"s_mov_b32 s{sd}, s{sptr}")
    e(f"s_and_b32 s{sd+1}, s{sptr+1}, 0xffff")
    e(f"s_mov_b32 s{sd+2}, {nbytes}")
    e(f"s_mov_b32 s{sd+3}, 0x00020000")

def rnd_bf16(v, t):
    e(f"v_cvt_pk_bf16_f32 v{t}, v{v}, v{v}")
    e(f"v_lshlrev_b32 v{v}, 16, v{t}")

def wave_allreduce(v, op, vaddr, vt):
    for m in (1, 2, 4, 8, 16, 32):
        e(f"v_xor_b32 v{vt}, {m*4}, v{vaddr}")
        e(f"ds_bpermute_b32 v{vt+1}, v{vt}, v{v}")
        e("s_waitcnt lgkmcnt(0)")
        e(f"{op} v{v}, v{v}, v{vt+1}")

kernels = []
def kernel_begin(label):
    L.append(".p2align 8")
    L.append(f".globl {label}")
    L.append(f".type {label},@function")
    lab(label)

def kd(label, nv, ns):
    kernels.append((label, nv, ns))

LDS_RED = 4096
def gemv_issue_loads(R, pitch):
    n = R // 16
    e("v_lshrrev_b32 v1, 4, v0")
    e("v_and_b32 v2, 15, v0")
    e(f"s_mov_b32 s22, {pitch}")
    e("v_mul_lo_u32 v3, v1, s22")
    e("v_lshl_add_u32 v3, v2, 4, v3")
    for i in range(n):
        if i == 0:
            e("s_mov_b32 s23, s20")
        else:
            e(f"s_add_u32 s23, s23, {16*pitch}")
        e(f"buffer_load_dwordx4 v[{16+4*i}:{19+4*i}], v3, s[4:7], s23 offen nt")

def gemv_compute(R):
    n = R // 16
    xb = 16 + 4 * n
    ab = xb + n
    e("v_lshlrev_b32 v4, 2, v1")
    for i in range(n):
        e(f"ds_read_b32 v{xb+i}, v4 offset:{64*i}")
    for j in range(8):
        e(f"v_mov_b32 v{ab+j}, 0")
    e("s_waitcnt lgkmcnt(0)")
    for i in range(n):
        e(f"s_waitcnt vmcnt({n-1-i})")
        for d in range(4):
            w = 16 + 4 * i + d
            e(f"v_lshlrev_b32 v5, 16, v{w}")
            e(f"v_and_b32 v6, 0xffff0000, v{w}")
            e(f"v_fmac_f32 v{ab+2*d}, v5, v{xb+i}")
            e(f"v_fmac_f32 v{ab+2*d+1}, v6, v{xb+i}")
    e("v_lshlrev_b32 v4, 9, v1")
    e("v_lshl_add_u32 v4, v2, 5, v4")
    e(f"ds_write_b128 v4, v[{ab}:{ab+3}] offset:{LDS_RED}")
    e(f"ds_write_b128 v4, v[{ab+4}:{ab+7}] offset:{LDS_RED+16}")
    e("s_waitcnt lgkmcnt(0)")
    e("s_barrier")
    e("v_cmp_gt_u32 vcc, 128, v0")
    e("s_and_saveexec_b64 s[30:31], vcc")
    e("s_cbranch_execz L_%d" % (len(L)))
    lbl = "L_%d" % (len(L) - 1)
    e("v_lshlrev_b32 v4, 2, v0")
    for g in range(16):
        e(f"ds_read_b32 v{16+g}, v4 offset:{LDS_RED+512*g}")
    e("s_waitcnt lgkmcnt(0)")
    for g in range(1, 16):
        e(f"v_add_f32 v16, v16, v{16+g}")
    e("buffer_store_dword v16, v4, s[8:11], s21 offen sc0 sc1")
    lab(lbl)
    e("s_mov_b64 exec, s[30:31]")
    return ab

def load_ptr(sd, ka):
    e(f"s_load_dwordx2 s[{sd}:{sd+1}], s[0:1], {ka}")

def sum_partials(vdst, vtid4, nsplit, stride, base, vtmp):
    for s in range(nsplit):
        e(f"s_mov_b32 s24, {base + s*stride}")
        e(f"buffer_load_dword v{vtmp+s}, v{vtid4}, s[8:11], s24 offen sc0 sc1")
    e("s_waitcnt vmcnt(0)")
    e(f"v_mov_b32 v{vdst}, v{vtmp}")
    for s in range(1, nsplit):
        e(f"v_add_f32 v{vdst}, v{vdst}, v{vtmp+s}")

def exit_if_ge(n):
    e(f"s_cmp_ge_u32 s2, {n}")
    e("s_cbranch_scc1 L_end_%d" % len(kernels))

def kernel_end():
    lab("L_end_%d" % len(kernels))
    e("s_endpgm")

def ln_modulate(vx, vm, vden, vca, vsa, t):
    e(f"v_sub_f32 v{vx}, v{vx}, v{vm}")
    rnd_bf16(vx, t)
    e(f"v_rcp_f32 v{t+1}, v{vden}")
    e("s_nop 0")
    e(f"v_mul_f32 v{t+2}, v{vx}, v{t+1}")
    e(f"v_fma_f32 v{t+3}, -v{t+2}, v{vden}, v{vx}")
    e(f"v_fma_f32 v{vx}, v{t+3}, v{t+1}, v{t+2}")
    rnd_bf16(vx, t)
    e(f"v_add_f32 v{vca}, 1.0, v{vca}")
    rnd_bf16(vca, t)
    e(f"v_mul_f32 v{vx}, v{vx}, v{vca}")
    rnd_bf16(vx, t)
    e(f"v_add_f32 v{vx}, v{vx}, v{vsa}")
    rnd_bf16(vx, t)

def ln_stats(va, vm, vden, vl4, t):
    e(f"v_add_f32 v{t+2}, v{va}, v{va+1}")
    e(f"v_add_f32 v{t+3}, v{va+2}, v{va+3}")
    e(f"v_add_f32 v{vm}, v{t+2}, v{t+3}")
    wave_allreduce(vm, "v_add_f32", vl4, t)
    e(f"v_lshrrev_b32 v{t}, 6, v0")
    e(f"v_lshlrev_b32 v{t}, 2, v{t}")
    e(f"ds_write_b32 v{t}, v{vm} offset:2048")
    e("s_waitcnt lgkmcnt(0)")
    e("s_barrier")
    e(f"v_mov_b32 v{t}, 0")
    e(f"ds_read_b128 v[{t+4}:{t+7}], v{t} offset:2048")
    e("s_waitcnt lgkmcnt(0)")
    e(f"v_add_f32 v{vm}, v{t+4}, v{t+5}")
    e(f"v_add_f32 v{vm}, v{vm}, v{t+6}")
    e(f"v_add_f32 v{vm}, v{vm}, v{t+7}")
    e(f"v_mul_f32 v{vm}, 0x3a800000, v{vm}")
    e(f"v_mov_b32 v{vden}, 0")
    for i in range(4):
        e(f"v_sub_f32 v{t+2}, v{va+i}, v{vm}")
        e(f"v_fmac_f32 v{vden}, v{t+2}, v{t+2}")
    wave_allreduce(vden, "v_add_f32", vl4, t)
    e(f"v_lshrrev_b32 v{t}, 6, v0")
    e(f"v_lshlrev_b32 v{t}, 2, v{t}")
    e(f"ds_write_b32 v{t}, v{vden} offset:2064")
    e("s_waitcnt lgkmcnt(0)")
    e("s_barrier")
    e(f"v_mov_b32 v{t}, 0")
    e(f"ds_read_b128 v[{t+4}:{t+7}], v{t} offset:2064")
    e("s_waitcnt lgkmcnt(0)")
    e(f"v_add_f32 v{vden}, v{t+4}, v{t+5}")
    e(f"v_add_f32 v{vden}, v{vden}, v{t+6}")
    e(f"v_add_f32 v{vden}, v{vden}, v{t+7}")
    e(f"v_mul_f32 v{vden}, 0x3a800000, v{vden}")
    rnd_bf16(vden, t)
    e(f"v_add_f32 v{vden}, 0x3727c5ac, v{vden}")
    rnd_bf16(vden, t)
    e(f"v_sqrt_f32 v{vden}, v{vden}")
    e("s_nop 0")
    rnd_bf16(vden, t)
    rnd_bf16(vm, t)

def k1():
    kernel_begin("k1_mod_kernel")
    R = 1024 // S1
    exit_if_ge(48 * S1)
    load_ptr(12, KA_WMOD); load_ptr(14, KA_WS); load_ptr(16, KA_C)
    e("s_waitcnt lgkmcnt(0)")
    srd(4, 12, 1024 * 6144 * 2)
    srd(8, 14, WS_SIZE)
    srd(12, 16, 2048)
    e("s_mul_hi_u32 s25, s2, 0x5555556")
    e("s_mul_i32 s26, s25, 48")
    e("s_sub_u32 s26, s2, s26")
    e(f"s_mul_i32 s20, s25, {R*12288}")
    e("s_lshl_b32 s27, s26, 8")
    e("s_add_u32 s20, s20, s27")
    e("s_mul_i32 s21, s25, 6144*4")
    e("s_lshl_b32 s27, s26, 9")
    e("s_add_u32 s21, s21, s27")
    e(f"s_add_u32 s21, s21, {WS_MODP}")
    gemv_issue_loads(R, 12288)
    e(f"v_cmp_gt_u32 vcc, {R}, v0")
    e("s_and_saveexec_b64 s[30:31], vcc")
    e("s_cbranch_execz L_k1_x")
    e(f"s_mul_i32 s24, s25, {R*2}")
    e("v_lshlrev_b32 v8, 1, v0")
    e("buffer_load_ushort v9, v8, s[12:15], s24 offen")
    e("s_waitcnt vmcnt(0)")
    e("v_lshlrev_b32 v9, 16, v9")
    e("s_mov_b32 s34, 0xbfb8aa3b")
    e("s_mov_b32 s35, 0xb2a57060")
    e("v_mul_f32 v10, s34, v9")
    e("v_fma_f32 v11, s34, v9, -v10")
    e("v_fma_f32 v11, s35, v9, v11")
    e("v_exp_f32 v10, v10")
    e("v_mul_f32 v11, 0x3f317218, v11")
    e("v_fma_f32 v10, v10, v11, v10")
    e("v_add_f32 v10, 1.0, v10")
    e("v_rcp_f32 v11, v10")
    e("s_nop 0")
    e("v_mul_f32 v12, v9, v11")
    e("v_fma_f32 v13, -v12, v10, v9")
    e("v_fma_f32 v9, v13, v11, v12")
    rnd_bf16(9, 10)
    e("v_lshlrev_b32 v8, 2, v0")
    e("ds_write_b32 v8, v9")
    lab("L_k1_x")
    e("s_mov_b64 exec, s[30:31]")
    e("s_waitcnt lgkmcnt(0)")
    e("s_barrier")
    gemv_compute(R)
    kernel_end()
    kd("k1_mod_kernel", 112, 40)

def k2():
    kernel_begin("k2_q_kernel")
    R = 1024 // S2
    exit_if_ge(32 * S2)
    load_ptr(12, KA_WQ); load_ptr(14, KA_WS); load_ptr(16, KA_X)
    e("s_waitcnt lgkmcnt(0)")
    srd(4, 12, 1024 * 4096 * 2)
    srd(8, 14, WS_SIZE)
    srd(12, 16, 2048)
    e("s_lshr_b32 s25, s2, 5")
    e("s_and_b32 s26, s2, 31")
    e(f"s_mul_i32 s20, s25, {R*8192}")
    e("s_lshl_b32 s27, s26, 8")
    e("s_add_u32 s20, s20, s27")
    e("s_mul_i32 s21, s25, 4096*4")
    e("s_lshl_b32 s27, s26, 9")
    e("s_add_u32 s21, s21, s27")
    e(f"s_add_u32 s21, s21, {WS_QP}")
    gemv_issue_loads(R, 8192)
    e("v_lshlrev_b32 v8, 3, v0")
    e("buffer_load_dwordx2 v[10:11], v8, s[12:15], 0 offen")
    e("v_and_b32 v7, 63, v0")
    e("v_lshlrev_b32 v7, 2, v7")
    e("s_waitcnt vmcnt(0)")
    e("v_and_b32 v13, 0xffff0000, v11")
    e("v_lshlrev_b32 v12, 16, v11")
    e("v_and_b32 v11, 0xffff0000, v10")
    e("v_lshlrev_b32 v10, 16, v10")
    ln_stats(10, 14, 15, 7, 100)
    e(f"v_cmp_gt_u32 vcc, {R}, v0")
    e("s_and_saveexec_b64 s[30:31], vcc")
    e("s_cbranch_execz L_k2_x")
    e(f"s_mul_i32 s24, s25, {R*2}")
    e("v_lshlrev_b32 v8, 1, v0")
    e("buffer_load_ushort v9, v8, s[12:15], s24 offen")
    e(f"s_mul_i32 s28, s25, {R*4}")
    e("v_lshlrev_b32 v8, 2, v0")
    e("v_add_u32 v8, s28, v8")
    sum_partials(104, 8, S1, 6144 * 4, WS_MODP, 60)
    sum_partials(105, 8, S1, 6144 * 4, WS_MODP + 4096, 60)
    rnd_bf16(104, 100)
    rnd_bf16(105, 100)
    e("v_lshlrev_b32 v9, 16, v9")
    ln_modulate(9, 14, 15, 105, 104, 100)
    e("v_lshlrev_b32 v8, 2, v0")
    e("ds_write_b32 v8, v9")
    lab("L_k2_x")
    e("s_mov_b64 exec, s[30:31]")
    e("s_waitcnt lgkmcnt(0)")
    e("s_barrier")
    gemv_compute(R)
    kernel_end()
    kd("k2_q_kernel", 112, 40)

def k3():
    kernel_begin("k3_attn_kernel")
    NT = 8
    exit_if_ge(4 * NCH)
    load_ptr(12, KA_K); load_ptr(14, KA_V); load_ptr(16, KA_WS)
    e("s_waitcnt lgkmcnt(0)")
    srd(4, 12, 1 << 26)
    srd(24, 14, 1 << 26)
    srd(8, 16, WS_SIZE)
    e("s_lshr_b32 s20, s2, 6")
    e("s_and_b32 s21, s2, 63")
    e("v_lshrrev_b32 v1, 6, v0")
    e("v_and_b32 v2, 63, v0")
    e("v_and_b32 v3, 15, v2")
    e("v_lshrrev_b32 v4, 4, v2")
    e("v_readfirstlane_b32 s22, v1")
    e("s_lshl_b32 s23, s20, 24")
    e("s_lshl_b32 s28, s21, 18")
    e("s_add_u32 s23, s23, s28")
    e("s_lshl_b32 s28, s22, 16")
    e("s_add_u32 s23, s23, s28")
    e("v_lshlrev_b32 v5, 8, v3")
    e("v_lshl_add_u32 v5, v4, 4, v5")
    e("v_lshlrev_b32 v6, 8, v4")
    e("v_lshl_add_u32 v6, v3, 4, v6")
    e("s_lshl_b32 s29, s22, 14")
    e("s_add_u32 s29, s29, 2048")
    KB = [40, 72]
    def issue_tile(t):
        kb = KB[t & 1]
        e(f"s_add_u32 s30, s23, {t*8192}")
        e("s_add_u32 s31, s30, 4096")
        for u in range(2):
            for j in range(4):
                r = kb + (u * 4 + j) * 4
                e(f"buffer_load_dwordx4 v[{r}:{r+3}], v5, s[4:7], s{30+u} offen offset:{64*j} nt")
        for h in range(2):
            e(f"s_add_u32 s32, s29, {(t&1)*8192 + h*4096}")
            e("s_mov_b32 m0, s32")
            e("s_nop 0")
            for i in range(4):
                e(f"buffer_load_dwordx4 v6, s[24:27], s{30+h} offen offset:{1024*i} lds")
    issue_tile(0)
    issue_tile(1)
    e("s_lshl_b32 s28, s20, 12")
    e("v_lshlrev_b32 v7, 4, v0")
    e("v_add_u32 v7, s28, v7")
    for s in range(S2):
        e(f"s_mov_b32 s33, {WS_QP + s*4096*4}")
        e(f"buffer_load_dwordx4 v[{104+4*s}:{107+4*s}], v7, s[8:11], s33 offen sc0 sc1")
    e(f"s_waitcnt vmcnt(0)")
    for s in range(1, S2):
        for d in range(4):
            e(f"v_add_f32 v{104+d}, v{104+d}, v{104+4*s+d}")
    e("v_cvt_pk_bf16_f32 v104, v104, v105")
    e("v_cvt_pk_bf16_f32 v105, v106, v107")
    e("v_lshlrev_b32 v7, 3, v0")
    e("ds_write_b64 v7, v[104:105] offset:0")
    e("s_waitcnt lgkmcnt(0)")
    e("s_barrier")
    e("v_lshlrev_b32 v7, 8, v3")
    e("v_lshl_add_u32 v7, v4, 4, v7")
    for j in range(4):
        e(f"ds_read_b128 v[{24+4*j}:{27+4*j}], v7 offset:{64*j}")
    e("v_cmp_gt_u32 vcc, 8, v3")
    e("s_waitcnt lgkmcnt(0)")
    for r in range(24, 40):
        e(f"v_cndmask_b32 v{r}, 0, v{r}, vcc")
    e("v_lshrrev_b32 v8, 2, v3")
    e("v_lshl_add_u32 v8, v4, 2, v8")
    e("v_lshlrev_b32 v8, 8, v8")
    e("v_and_b32 v9, 3, v3")
    e("v_lshl_add_u32 v8, v9, 3, v8")
    e("v_add_u32 v8, s29, v8")
    for r in range(136, 168):
        e(f"v_mov_b32 v{r}, 0")
    e("v_mov_b32 v170, 0xff800000")
    e("v_mov_b32 v171, 0")
    SC = 0x3db504f3
    LOG2E = 0x3fb8aa3b
    for t in range(NT):
        kb = KB[t & 1]
        last2 = (t + 1 < NT)
        e(f"s_waitcnt vmcnt({24 if last2 else 8})")
        for u in range(2):
            for j in range(4):
                r = kb + (u * 4 + j) * 4
                c = "0" if j == 0 else f"v[{10+4*u}:{13+4*u}]"
                e(f"v_mfma_f32_16x16x32_bf16 v[{10+4*u}:{13+4*u}], v[{r}:{r+3}], v[{24+4*j}:{27+4*j}], {c}")
        e("s_nop 7")
        e("s_nop 1")
        for p in range(4):
            a, b = 10 + 2 * p, 11 + 2 * p
            e(f"v_cvt_pk_bf16_f32 v18, v{a}, v{b}")
            e(f"v_lshlrev_b32 v{a}, 16, v18")
            e(f"v_and_b32 v{b}, 0xffff0000, v18")
            e(f"v_mul_f32 v{a}, {SC}, v{a}")
            e(f"v_mul_f32 v{b}, {SC}, v{b}")
            e(f"v_cvt_pk_bf16_f32 v18, v{a}, v{b}")
            e(f"v_lshlrev_b32 v{a}, 16, v18")
            e(f"v_and_b32 v{b}, 0xffff0000, v18")
        e("v_max3_f32 v18, v10, v11, v12")
        e("v_max3_f32 v19, v13, v14, v15")
        e("v_max3_f32 v18, v18, v16, v17")
        e("v_max_f32 v18, v18, v19")
        e("v_mov_b32 v19, v18")
        e("s_nop 1")
        e("v_permlane32_swap_b32 v18, v19")
        e("v_max_f32 v18, v18, v19")
        e("v_mov_b32 v19, v18")
        e("s_nop 1")
        e("v_permlane16_swap_b32 v18, v19")
        e("v_max_f32 v18, v18, v19")
        e("v_max_f32 v19, v170, v18")
        e("v_sub_f32 v20, v170, v19")
        e(f"v_mul_f32 v20, {LOG2E}, v20")
        e("v_exp_f32 v20, v20")
        e("v_mov_b32 v170, v19")
        for r in range(10, 18):
            e(f"v_sub_f32 v{r}, v{r}, v19")
            e(f"v_mul_f32 v{r}, {LOG2E}, v{r}")
            e(f"v_exp_f32 v{r}, v{r}")
        e("v_mul_f32 v171, v171, v20")
        for r in range(10, 18):
            e(f"v_add_f32 v171, v171, v{r}")
        for r in range(136, 168):
            e(f"v_mul_f32 v{r}, v{r}, v20")
        for p in range(4):
            e(f"v_cvt_pk_bf16_f32 v{20+p}, v{10+2*p}, v{11+2*p}")
        e(f"s_waitcnt vmcnt({16 if last2 else 0})")
        so = (t & 1) * 8192
        for dt in range(8):
            r = 172 + (dt & 1) * 4
            e(f"ds_read_b64_tr_b16 v[{r}:{r+1}], v8 offset:{so + dt*32}")
            e(f"ds_read_b64_tr_b16 v[{r+2}:{r+3}], v8 offset:{so + dt*32 + 4096}")
            e("s_waitcnt lgkmcnt(0)")
            e(f"v_mfma_f32_16x16x32_bf16 v[{136+4*dt}:{139+4*dt}], v[{r}:{r+3}], v[20:23], v[{136+4*dt}:{139+4*dt}]")
        if t + 2 < NT:
            issue_tile(t + 2)
        e("s_nop 7")
    e("v_mov_b32 v19, v171")
    e("s_nop 1")
    e("v_permlane32_swap_b32 v171, v19")
    e("v_add_f32 v171, v171, v19")
    e("v_mov_b32 v19, v171")
    e("s_nop 1")
    e("v_permlane16_swap_b32 v171, v19")
    e("v_add_f32 v171, v171, v19")
    e("s_barrier")
    e("v_lshlrev_b32 v7, 2, v3")
    e("v_lshl_add_u32 v7, v1, 6, v7")
    e("ds_write_b32 v7, v170 offset:0")
    e("s_waitcnt lgkmcnt(0)")
    e("s_barrier")
    e("v_lshlrev_b32 v7, 2, v3")
    for w in range(4):
        e(f"ds_read_b32 v{10+w}, v7 offset:{64*w}")
    e("s_waitcnt lgkmcnt(0)")
    e("v_max3_f32 v14, v10, v11, v12")
    e("v_max_f32 v14, v14, v13")
    e("v_mov_b32 v2, v14")
    e("v_sub_f32 v15, v170, v14")
    e(f"v_mul_f32 v15, {LOG2E}, v15")
    e("v_exp_f32 v15, v15")
    e("s_nop 0")
    e("v_mul_f32 v171, v171, v15")
    for r in range(136, 168):
        e(f"v_mul_f32 v{r}, v{r}, v15")
    e("v_lshlrev_b32 v7, 9, v3")
    e("v_lshl_add_u32 v7, v4, 4, v7")
    e("v_lshl_add_u32 v7, v1, 13, v7")
    for dt in range(8):
        e(f"ds_write_b128 v7, v[{136+4*dt}:{139+4*dt}] offset:{2048+64*dt}")
    e("v_lshlrev_b32 v9, 2, v3")
    e("v_lshl_add_u32 v9, v1, 6, v9")
    e("ds_write_b32 v9, v171 offset:1024")
    e("s_waitcnt lgkmcnt(0)")
    e("s_barrier")
    e("v_lshlrev_b32 v7, 4, v0")
    for w in range(4):
        e(f"ds_read_b128 v[{10+4*w}:{13+4*w}], v7 offset:{2048+8192*w}")
    e("s_waitcnt lgkmcnt(0)")
    for w in range(1, 4):
        for d in range(4):
            e(f"v_add_f32 v{10+d}, v{10+d}, v{10+4*w+d}")
    e("s_lshl_b32 s28, s2, 12")
    e(f"s_add_u32 s28, s28, {WS_AO}")
    e("buffer_store_dwordx4 v[10:13], v7, s[8:11], s28 offen sc0 sc1")
    e("v_cmp_gt_u32 vcc, 8, v0")
    e("s_and_saveexec_b64 s[30:31], vcc")
    e("s_cbranch_execz L_k3_ml")
    e("v_lshlrev_b32 v7, 2, v0")
    for w in range(4):
        e(f"ds_read_b32 v{10+w}, v7 offset:{1024+64*w}")
    e("s_waitcnt lgkmcnt(0)")
    e("v_add_f32 v10, v10, v11")
    e("v_add_f32 v10, v10, v12")
    e("v_add_f32 v10, v10, v13")
    e("s_lshl_b32 s28, s2, 5")
    e(f"s_add_u32 s33, s28, {WS_AL}")
    e("buffer_store_dword v10, v7, s[8:11], s33 offen sc0 sc1")
    e(f"s_add_u32 s33, s28, {WS_AM}")
    e("buffer_store_dword v2, v7, s[8:11], s33 offen sc0 sc1")
    lab("L_k3_ml")
    e("s_mov_b64 exec, s[30:31]")
    kernel_end()
    kd("k3_attn_kernel", 184, 40)

def k4():
    kernel_begin("k4_wo_kernel")
    R = 128
    exit_if_ge(8 * S4)
    load_ptr(12, KA_WO); load_ptr(14, KA_WS)
    e("s_waitcnt lgkmcnt(0)")
    srd(4, 12, 4096 * 1024 * 2)
    srd(8, 14, WS_SIZE)
    e("s_lshr_b32 s25, s2, 3")
    e("s_and_b32 s26, s2, 7")
    e(f"s_mul_i32 s20, s25, {R*2048}")
    e("s_lshl_b32 s27, s26, 8")
    e("s_add_u32 s20, s20, s27")
    e("s_lshl_b32 s21, s25, 12")
    e("s_lshl_b32 s27, s26, 9")
    e("s_add_u32 s21, s21, s27")
    e(f"s_add_u32 s21, s21, {WS_WOP}")
    gemv_issue_loads(R, 2048)
    e("s_lshr_b32 s28, s25, 3")
    e("s_and_b32 s29, s25, 7")
    e("v_and_b32 v7, 63, v0")
    e("v_lshlrev_b32 v8, 5, v7")
    e("s_lshl_b32 s24, s28, 11")
    e("s_lshl_b32 s27, s29, 2")
    e("s_add_u32 s24, s24, s27")
    e(f"s_add_u32 s27, s24, {WS_AM}")
    e("buffer_load_dword v9, v8, s[8:11], s27 offen sc0 sc1")
    e(f"s_add_u32 s27, s24, {WS_AL}")
    e("buffer_load_dword v10, v8, s[8:11], s27 offen sc0 sc1")
    e("v_lshlrev_b32 v7, 2, v7")
    e("s_waitcnt vmcnt(0)")
    e("v_mov_b32 v11, v9")
    wave_allreduce(11, "v_max_f32", 7, 100)
    e("v_sub_f32 v9, v9, v11")
    e("v_mul_f32 v9, 0x3fb8aa3b, v9")
    e("v_exp_f32 v9, v9")
    e("s_nop 0")
    e("v_mul_f32 v10, v10, v9")
    wave_allreduce(10, "v_add_f32", 7, 100)
    e("v_rcp_f32 v10, v10")
    e("s_nop 0")
    e("v_mul_f32 v9, v9, v10")
    e("ds_write_b32 v7, v9 offset:2048")
    e("s_waitcnt lgkmcnt(0)")
    e("s_barrier")
    e(f"v_cmp_gt_u32 vcc, {R}, v0")
    e("s_and_saveexec_b64 s[30:31], vcc")
    e("s_cbranch_execz L_k4_x")
    e("s_lshl_b32 s24, s28, 18")
    e("s_lshl_b32 s27, s29, 9")
    e("s_add_u32 s24, s24, s27")
    e(f"s_add_u32 s24, s24, {WS_AO}")
    e("v_lshlrev_b32 v8, 2, v0")
    e("v_mov_b32 v12, 0")
    e("v_mov_b32 v11, 0")
    for half in range(2):
        for c in range(32):
            e(f"s_add_u32 s27, s24, {(half*32+c)*4096}")
            e(f"buffer_load_dword v{60+c}, v8, s[8:11], s27 offen sc0 sc1")
        for c in range(0, 32, 4):
            e(f"ds_read_b128 v[{100}:{103}], v11 offset:{2048+(half*32+c)*4}")
            e("s_waitcnt lgkmcnt(0)")
            e(f"s_waitcnt vmcnt({28-c})")
            for k in range(4):
                e(f"v_fmac_f32 v12, v{60+c+k}, v{100+k}")
    rnd_bf16(12, 100)
    e("ds_write_b32 v8, v12")
    lab("L_k4_x")
    e("s_mov_b64 exec, s[30:31]")
    e("s_waitcnt lgkmcnt(0)")
    e("s_barrier")
    gemv_compute(R)
    kernel_end()
    kd("k4_wo_kernel", 112, 40)

def k5():
    kernel_begin("k5_gu_kernel")
    R = 1024 // S5
    exit_if_ge(2 * S5 * 28)
    load_ptr(12, KA_WG); load_ptr(14, KA_WS); load_ptr(16, KA_X); load_ptr(18, KA_WU)
    e("s_waitcnt lgkmcnt(0)")
    e("s_mul_hi_u32 s25, s2, 0x924924a")
    e("s_mul_i32 s26, s25, 28")
    e("s_sub_u32 s26, s2, s26")
    e(f"s_and_b32 s28, s25, {S5-1}")
    e(f"s_cmp_ge_u32 s25, {S5}")
    e("s_cselect_b32 s12, s18, s12")
    e("s_cselect_b32 s13, s19, s13")
    srd(4, 12, 1024 * 3584 * 2)
    srd(8, 14, WS_SIZE)
    srd(12, 16, 2048)
    e(f"s_mul_i32 s20, s28, {R*7168}")
    e("s_lshl_b32 s27, s26, 8")
    e("s_add_u32 s20, s20, s27")
    e("s_mul_i32 s21, s25, 3584*4")
    e("s_lshl_b32 s27, s26, 9")
    e("s_add_u32 s21, s21, s27")
    e(f"s_add_u32 s21, s21, {WS_GUP}")
    gemv_issue_loads(R, 7168)
    e("v_lshlrev_b32 v8, 4, v0")
    e("v_mov_b32 v100, 0"); e("v_mov_b32 v101, 0"); e("v_mov_b32 v102, 0"); e("v_mov_b32 v103, 0")
    for half in range(2):
        for s in range(16):
            e(f"s_mov_b32 s24, {WS_WOP + (half*16+s)*4096}")
            e(f"buffer_load_dwordx4 v[{112+4*s}:{115+4*s}], v8, s[8:11], s24 offen sc0 sc1")
        for s in range(16):
            e(f"s_waitcnt vmcnt({15-s})")
            for d in range(4):
                e(f"v_add_f32 v{100+d}, v{100+d}, v{112+4*s+d}")
    for s in range(S1):
        e(f"s_mov_b32 s24, {WS_MODP + s*6144*4 + 2*4096}")
        e(f"buffer_load_dwordx4 v[{112+4*s}:{115+4*s}], v8, s[8:11], s24 offen sc0 sc1")
    e("v_lshlrev_b32 v9, 3, v0")
    e("buffer_load_dwordx2 v[10:11], v9, s[12:15], 0 offen")
    e("s_waitcnt vmcnt(0)")
    for s in range(1, S1):
        for d in range(4):
            e(f"v_add_f32 v{112+d}, v{112+d}, v{112+4*s+d}")
    e("v_and_b32 v13, 0xffff0000, v11")
    e("v_lshlrev_b32 v12, 16, v11")
    e("v_and_b32 v11, 0xffff0000, v10")
    e("v_lshlrev_b32 v10, 16, v10")
    for d in range(4):
        rnd_bf16(100 + d, 104)
        rnd_bf16(112 + d, 104)
        e(f"v_mul_f32 v{100+d}, v{100+d}, v{112+d}")
        rnd_bf16(100 + d, 104)
        e(f"v_add_f32 v{10+d}, v{10+d}, v{100+d}")
        rnd_bf16(10 + d, 104)
    e("ds_write_b128 v8, v[10:13] offset:12288")
    e(f"s_mov_b32 s24, {WS_X1}")
    e("buffer_store_dwordx4 v[10:13], v8, s[8:11], s24 offen sc0 sc1")
    e("v_and_b32 v7, 63, v0")
    e("v_lshlrev_b32 v7, 2, v7")
    ln_stats(10, 14, 15, 7, 104)
    e(f"v_cmp_gt_u32 vcc, {R}, v0")
    e("s_and_saveexec_b64 s[30:31], vcc")
    e("s_cbranch_execz L_k5_x")
    e(f"s_mul_i32 s28, s28, {R*4}")
    e("v_lshlrev_b32 v8, 2, v0")
    e("v_add_u32 v8, s28, v8")
    e("ds_read_b32 v9, v8 offset:12288")
    sum_partials(108, 8, S1, 6144 * 4, WS_MODP + 3 * 4096, 112)
    sum_partials(109, 8, S1, 6144 * 4, WS_MODP + 4 * 4096, 112)
    rnd_bf16(108, 104)
    rnd_bf16(109, 104)
    e("s_waitcnt lgkmcnt(0)")
    ln_modulate(9, 14, 15, 109, 108, 104)
    e("v_lshlrev_b32 v8, 2, v0")
    e("ds_write_b32 v8, v9")
    lab("L_k5_x")
    e("s_mov_b64 exec, s[30:31]")
    e("s_waitcnt lgkmcnt(0)")
    e("s_barrier")
    gemv_compute(R)
    kernel_end()
    kd("k5_gu_kernel", 184, 40)

def k6():
    kernel_begin("k6_down_kernel")
    R = 128
    NWG = 8 * S6
    exit_if_ge(NWG)
    load_ptr(12, KA_WD); load_ptr(14, KA_WS); load_ptr(16, KA_DBG); load_ptr(18, KA_OUT)
    e("s_waitcnt lgkmcnt(0)")
    srd(4, 12, 3584 * 1024 * 2)
    srd(8, 14, WS_SIZE)
    srd(12, 16, 256)
    srd(16, 18, 2048)
    e("s_lshr_b32 s25, s2, 3")
    e("s_and_b32 s26, s2, 7")
    e(f"s_mul_i32 s20, s25, {R*2048}")
    e("s_lshl_b32 s27, s26, 8")
    e("s_add_u32 s20, s20, s27")
    e("s_lshl_b32 s21, s25, 12")
    e("s_lshl_b32 s27, s26, 9")
    e("s_add_u32 s21, s21, s27")
    e(f"s_add_u32 s21, s21, {WS_DP}")
    gemv_issue_loads(R, 2048)
    e(f"v_cmp_gt_u32 vcc, {R}, v0")
    e("s_and_saveexec_b64 s[30:31], vcc")
    e("s_cbranch_execz L_k6_x")
    e("s_lshl_b32 s28, s25, 9")
    e("v_lshlrev_b32 v8, 2, v0")
    e("v_add_u32 v8, s28, v8")
    sum_partials(104, 8, S5, 3584 * 4, WS_GUP, 60)
    sum_partials(105, 8, S5, 3584 * 4, WS_GUP + S5 * 3584 * 4, 60)
    rnd_bf16(104, 100)
    rnd_bf16(105, 100)
    e("v_mul_f32 v100, v104, v104")
    e("v_mul_f32 v100, 0x3d372713, v100")
    e("v_add_f32 v100, 1.0, v100")
    e("v_mul_f32 v100, v100, v104")
    e("v_mul_f32 v100, 0x40135761, v100")
    e("v_exp_f32 v100, v100")
    e("s_nop 0")
    e("v_add_f32 v100, 1.0, v100")
    e("v_rcp_f32 v100, v100")
    e("s_nop 0")
    e("v_sub_f32 v100, 1.0, v100")
    e("v_mul_f32 v104, v104, v100")
    rnd_bf16(104, 100)
    e("v_mul_f32 v104, v104, v105")
    rnd_bf16(104, 100)
    e("v_lshlrev_b32 v8, 2, v0")
    e("ds_write_b32 v8, v104")
    lab("L_k6_x")
    e("s_mov_b64 exec, s[30:31]")
    e("s_waitcnt lgkmcnt(0)")
    e("s_barrier")
    gemv_compute(R)
    e("s_waitcnt vmcnt(0)")
    e("s_barrier")
    e("v_mov_b32 v20, 1")
    e("v_mov_b32 v21, 0")
    e("v_cmp_eq_u32 vcc, 0, v0")
    e("s_and_saveexec_b64 s[30:31], vcc")
    e("buffer_atomic_add v20, v21, s[12:15], 0 offen sc0 sc1")
    e("s_waitcnt vmcnt(0)")
    e("ds_write_b32 v21, v20 offset:2048")
    e("s_mov_b64 exec, s[30:31]")
    e("s_waitcnt lgkmcnt(0)")
    e("s_barrier")
    e("ds_read_b32 v20, v21 offset:2048")
    e("s_waitcnt lgkmcnt(0)")
    e("v_readfirstlane_b32 s24, v20")
    e(f"s_cmp_lg_u32 s24, {NWG-1}")
    e("s_cbranch_scc1 L_end_%d" % len(kernels))
    e("v_lshlrev_b32 v8, 4, v0")
    for s in range(S6):
        e(f"s_mov_b32 s24, {WS_DP + s*4096}")
        e(f"buffer_load_dwordx4 v[{60+4*s}:{63+4*s}], v8, s[8:11], s24 offen sc0 sc1")
    for s in range(S1):
        e(f"s_mov_b32 s24, {WS_MODP + s*6144*4 + 5*4096}")
        e(f"buffer_load_dwordx4 v[{20+4*s}:{23+4*s}], v8, s[8:11], s24 offen sc0 sc1")
    e(f"s_mov_b32 s24, {WS_X1}")
    e("buffer_load_dwordx4 v[10:13], v8, s[8:11], s24 offen sc0 sc1")
    e("s_waitcnt vmcnt(0)")
    for s in range(1, S6):
        for d in range(4):
            e(f"v_add_f32 v{60+d}, v{60+d}, v{60+4*s+d}")
    for s in range(1, S1):
        for d in range(4):
            e(f"v_add_f32 v{20+d}, v{20+d}, v{20+4*s+d}")
    for d in range(4):
        rnd_bf16(60 + d, 100)
        rnd_bf16(20 + d, 100)
        e(f"v_mul_f32 v{60+d}, v{60+d}, v{20+d}")
        rnd_bf16(60 + d, 100)
        e(f"v_add_f32 v{10+d}, v{10+d}, v{60+d}")
    e("v_cvt_pk_bf16_f32 v10, v10, v11")
    e("v_cvt_pk_bf16_f32 v11, v12, v13")
    e("v_lshlrev_b32 v8, 3, v0")
    e("buffer_store_dwordx2 v[10:11], v8, s[16:19], 0 offen")
    kernel_end()
    kd("k6_down_kernel", 184, 40)

def main():
    launches = [
        ("k1_mod_kernel", 48 * S1, 256, 16384),
        ("k2_q_kernel", 32 * S2, 256, 16384),
        ("k3_attn_kernel", 4 * NCH, 256, 67584),
        ("k4_wo_kernel", 8 * S4, 256, 16384),
        ("k5_gu_kernel", 2 * S5 * 28, 256, 16384),
        ("k6_down_kernel", 8 * S6, 256, 16384),
    ]
    hdr = open("cdna_kernels/%s.s.ref" % NAME).read().split("; Override launch")[0]
    out = [hdr.rstrip("\n")]
    for k, g, b, lds in launches:
        out.append(f"; @launch kernel={k} grid=({g},1,1) block=({b},1,1) lds={lds}")
    out.append('.amdgcn_target "amdgcn-amd-amdhsa--gfx950"')
    out.append(".text")
    k1(); k2(); k3(); k4(); k5(); k6()
    out += L
    out.append('.section .rodata,"a"')
    for lbl, nv, ns in kernels:
        out.append(".p2align 6")
        out.append(f".amdhsa_kernel {lbl}")
        out.append(f"  .amdhsa_next_free_vgpr {nv}")
        out.append(f"  .amdhsa_next_free_sgpr {ns}")
        out.append(f"  .amdhsa_accum_offset {nv}")
        out.append("  .amdhsa_group_segment_fixed_size 0")
        out.append("  .amdhsa_kernarg_size 112")
        out.append("  .amdhsa_user_sgpr_count 2")
        out.append("  .amdhsa_user_sgpr_kernarg_segment_ptr 1")
        out.append("  .amdhsa_system_sgpr_workgroup_id_x 1")
        out.append(".end_amdhsa_kernel")
    open("cdna_kernels/%s.s" % NAME, "w").write("\n".join(out) + "\n")

if __name__ == "__main__":
    main()
```
